```python
import torch

def _softmax(x, axis=-1):
    return torch.softmax(x, dim=axis)
def _gelu(x):
    return torch.nn.functional.gelu(x, approximate="tanh")
def _silu(x):
    return torch.nn.functional.silu(x)
def _sigmoid(x):
    return torch.sigmoid(x)
def _layernorm(x, axis=-1, eps=1e-5):
    m = x.mean(dim=axis, keepdim=True)
    v = x.var(dim=axis, keepdim=True, unbiased=False)
    return (x - m) / torch.sqrt(v + eps)
def _scatter_add(tgt, idx, src, axis=0):
    return tgt.clone().index_add_(axis, idx, src)
def _segment_sum(src, seg, n):
    out = torch.zeros((n,) + src.shape[1:], dtype=src.dtype)
    return out.index_add_(0, seg, src)
def _pad(x, pw):
    flat = tuple(v for pair in reversed(pw) for v in pair)
    return torch.nn.functional.pad(x, flat)

kernel_name = 'gated_mix__ssm_conv_s4__glu_gated_reglu__prompt'

def setup_inputs():

    _w = (lambda a: (lambda t: t.to(torch.bfloat16) if t.is_floating_point() else t)(torch.as_tensor(a)))
    def _A_setup():
        B, L, D, N = 1, 2048, 512, 128
        A_re = -(lambda _x: torch.exp(torch.as_tensor(_x)))((lambda *s: torch.randn(*s, dtype=torch.bfloat16) * 6.4)(D, N))
        A_im = torch.pi * (lambda *s: torch.randn(*s, dtype=torch.bfloat16) * 0.05)(D, N)
        B_re = (lambda *s: torch.randn(*s, dtype=torch.bfloat16) * 0.1)(D, N)
        B_im = (lambda *s: torch.randn(*s, dtype=torch.bfloat16) * 0.1)(D, N)
        C_re = (lambda *s: torch.randn(*s, dtype=torch.bfloat16) * 0.1)(D, N)
        C_im = (lambda *s: torch.randn(*s, dtype=torch.bfloat16) * 0.1)(D, N)
        log_dt = (lambda *s: torch.randn(*s, dtype=torch.bfloat16) * 0.05)(D) * 0.5 - 4.0
        Dskip = (lambda *s: torch.randn(*s, dtype=torch.bfloat16) * 0.05)(D)
        return {
            "u": _w((lambda *s: torch.randn(*s, dtype=torch.bfloat16) * 0.05)(B, L, D)),
            "A_re": _w(A_re),
            "A_im": _w(A_im),
            "B_re": _w(B_re),
            "B_im": _w(B_im),
            "C_re": _w(C_re),
            "C_im": _w(C_im),
            "log_dt": _w(log_dt),
            "Dskip": _w(Dskip),
        }
    _A_in = _A_setup()

    def _B_setup():
        B, S, D, F = 1, 2048, 512, 1376
        return {
            "x": _w((lambda *s: torch.randn(*s, dtype=torch.bfloat16) * 0.05)(B, S, D)),
            "W_gate": _w((lambda *s: torch.randn(*s, dtype=torch.bfloat16) * 0.8)(D, F) * (2.0 / D) ** 0.5),
            "W_up": _w((lambda *s: torch.randn(*s, dtype=torch.bfloat16) * 0.8)(D, F) * (2.0 / D) ** 0.5),
            "W_down": _w((lambda *s: torch.randn(*s, dtype=torch.bfloat16) * 0.8)(F, D) * (1.0 / F) ** 0.5),
        }
    _B_in = _B_setup()

    return {
        "A_u": _A_in["u"],
        "A_A_re": _A_in["A_re"],
        "A_A_im": _A_in["A_im"],
        "A_B_re": _A_in["B_re"],
        "A_B_im": _A_in["B_im"],
        "A_C_re": _A_in["C_re"],
        "A_C_im": _A_in["C_im"],
        "A_log_dt": _A_in["log_dt"],
        "A_Dskip": _A_in["Dskip"],
        "B_x": _B_in["x"],
        "B_W_gate": _B_in["W_gate"],
        "B_W_up": _B_in["W_up"],
        "B_W_down": _B_in["W_down"],
        "gate_w": _w((lambda *s: torch.randn(*s, dtype=torch.bfloat16) * 0.05)(512) * 16.0),
    }

def reference(A_u, A_A_re, A_A_im, A_B_re, A_B_im, A_C_re, A_C_im, A_log_dt, A_Dskip, B_x, B_W_gate, B_W_up, B_W_down, gate_w):
    def _A_ref(u, A_re, A_im, B_re, B_im, C_re, C_im, log_dt, Dskip):
        Bsz, L, D = u.shape
        dt = torch.exp(log_dt)[:, None]
        A = A_re + 1j * A_im
        Bc = B_re + 1j * B_im
        Cc = C_re + 1j * C_im
        logdA = dt * A
        dB = dt * Bc
        l = (lambda x, dt: x.to(dt))(torch.arange(L), A_re.dtype)
        P = torch.exp(logdA[:, :, None] * l[None, None, :])
        K = torch.einsum("dn,dnl,dn->dl", Cc, P, dB).real
        L2 = 2 * L
        Kp = _pad(K, ((0, 0), (0, L)))
        up = (lambda x, *d: x.permute(*d))(u, 0, 2, 1)
        up = _pad(up, ((0, 0), (0, 0), (0, L)))
        Kf = (lambda x, axes=(-2,-1): torch.fft.rfft2(x.float(), dim=axes))(Kp[:, None, :], axes=(-2, -1))
        Uf = (lambda x, axes=(-2,-1): torch.fft.rfft2(x.float(), dim=axes))(up[:, :, None, :], axes=(-2, -1))
        Yf = Uf * Kf[None, :, :, :]
        y = (lambda x, s, axes=(-2,-1): torch.fft.irfft2(x, s=s, dim=axes).to(torch.bfloat16))(Yf, (1, L2), axes=(-2, -1))[:, :, 0, :L]
        y = (lambda x, *d: x.permute(*d))(y, 0, 2, 1) + u * Dskip[None, None, :]
        return y

    def _B_ref(x, W_gate, W_up, W_down):
        gate = torch.einsum("bsd,df->bsf", x, W_gate)
        up = torch.einsum("bsd,df->bsf", x, W_up)
        gate = gate * (lambda x, dt: x.to(dt))(gate > 0, gate.dtype)
        h = gate * up
        return torch.einsum("bsf,fd->bsd", h, W_down)

    x = A_u
    g = _sigmoid((x * gate_w).sum(-1, keepdims=True))
    a = _A_ref(x, A_A_re, A_A_im, A_B_re, A_B_im, A_C_re, A_C_im, A_log_dt, A_Dskip)
    b = _B_ref(x, B_W_gate, B_W_up, B_W_down)
    return g * a + (1 - g) * b
```

```python
import re

def vr(base, n=1):
    return f"v{base}" if n == 1 else f"v[{base}:{base+n-1}]"
def sr(base, n=1):
    return f"s{base}" if n == 1 else f"s[{base}:{base+n-1}]"

_reg = re.compile(r'^(-|\|)?(v|s|a)(\d+)\|?$')
_rng = re.compile(r'^(-)?(v|s|a)\[(\d+):(\d+)\]$')
def regs_of(tok):
    tok = tok.strip()
    m = _reg.match(tok)
    if m: return {(m.group(2), int(m.group(3)))}
    m = _rng.match(tok)
    if m: return {(m.group(2), i) for i in range(int(m.group(3)), int(m.group(4)) + 1)}
    if tok in ("vcc",): return {("s", "vcc_lo"), ("s", "vcc_hi")}
    if tok in ("vcc_lo", "vcc_hi", "m0"): return {("s", tok)}
    if tok in ("exec",): return {("s", "exec_lo"), ("s", "exec_hi")}
    if tok in ("exec_lo", "exec_hi"): return {("s", tok)}
    return set()

TRANS = ("v_exp_f32", "v_log_f32", "v_rcp_f32", "v_rsq_f32", "v_sqrt_f32", "v_sin_f32", "v_cos_f32")
class Ins:
    __slots__ = ("text", "op", "ops", "mods", "kind", "dst", "src", "srcC", "passes", "label", "target")
    def __init__(self, text):
        self.text = text; self.label = None; self.target = None
        t = text.split(";")[0].strip()
        self.op = ""; self.ops = []; self.mods = ""; self.kind = "none"; self.dst = set(); self.src = set(); self.srcC = set(); self.passes = 0
        if not t: return
        if t.endswith(":"):
            self.label = t[:-1]; self.kind = "label"; return
        if t.startswith("."):
            self.kind = "dir"; return
        parts = t.split(None, 1)
        self.op = parts[0]
        rest = parts[1] if len(parts) > 1 else ""
        toks = [x.strip() for x in re.split(r',(?![^\[]*\])', rest)] if rest else []
        if toks:
            last = toks[-1].split()
            if last:
                toks[-1] = last[0]; self.mods = " ".join(last[1:])
        self.ops = toks
        op = self.op
        R = [regs_of(x) for x in toks]
        if op.startswith("v_mfma"):
            self.kind = "mfma"; self.dst = R[0]; self.src = R[1] | R[2] | R[3]; self.srcC = R[3]
            self.passes = 8 if "32x32" in op else 4
            if "32x32x16" in op or "32x32x32" in op: self.passes = 8
            if "16x16x32" in op or "16x16x64" in op: self.passes = 4
        elif op.startswith("v_"):
            self.kind = "valu"
            if op.startswith("v_cmp"):
                self.dst = R[0]; self.src = set().union(*R[1:])
            elif op.startswith("v_permlane32_swap") or op.startswith("v_permlane16_swap") or op.startswith("v_swap"):
                self.dst = R[0] | R[1]; self.src = R[0] | R[1]
            elif "_co_" in op:
                self.dst = R[0] | R[1]; self.src = set().union(*R[2:])
            else:
                self.dst = R[0]; self.src = set().union(*R[1:]) if len(R) > 1 else set()
                if op.startswith(("v_fmac", "v_mac", "v_writelane", "v_dot2c", "v_pk_fmac")) or "dpp" in op or "row_" in self.mods or "quad_perm" in self.mods or "wave_" in self.mods:
                    self.src = self.src | R[0]
        elif op.startswith("ds_"):
            self.kind = "ds"
            if op.startswith(("ds_read", "ds_bpermute", "ds_permute", "ds_swizzle")):
                self.dst = R[0]; self.src = set().union(*R[1:])
            else:
                self.src = set().union(*R) if R else set()
                if "rtn" in op: self.dst = R[0]
        elif op.startswith(("buffer_", "global_")):
            self.kind = "vmem"
            islds = (" lds" in (" " + self.mods)) or op.startswith("global_load_lds")
            if "load" in op and not islds:
                self.dst = R[0]; self.src = set().union(*R[1:])
            elif "atomic" in op and ("glc" in self.mods or "sc0" in self.mods):
                self.dst = R[0]; self.src = set().union(*R)
            else:
                self.src = set().union(*R)
            if islds: self.src = self.src | {("s", "m0")}
        elif op.startswith("s_"):
            self.kind = "salu"
            if op in ("s_branch",) or op.startswith("s_cbranch"):
                self.kind = "branch"; self.target = toks[0]
            elif op.startswith(("s_cmp", "s_waitcnt", "s_barrier", "s_nop", "s_endpgm", "s_setprio", "s_sleep", "s_bitcmp", "s_setreg", "s_sethalt")):
                self.src = set().union(*R) if R else set()
            else:
                self.dst = R[0] if R else set(); self.src = set().union(*R[1:]) if len(R) > 1 else set()
                if "saveexec" in op: self.dst = self.dst | regs_of("exec")
    def states(self):
        if self.kind in ("label", "dir", "none"): return 0
        if self.op == "s_nop": return int(self.ops[0], 0) + 1
        return 1

def need(prod, cons):
    n = 0
    pv = {r for r in prod.dst if r[0] in "va"}; ps = {r for r in prod.dst if r[0] == "s"}
    cv_r = {r for r in cons.src if r[0] in "va"}; cs_r = {r for r in cons.src if r[0] == "s"}
    cv_w = {r for r in cons.dst if r[0] in "va"}
    if prod.kind == "valu":
        if cons.kind == "mfma" and pv & cv_r: n = max(n, 2)
        if cons.kind == "valu":
            if prod.op in TRANS or prod.op.replace("_e32", "").replace("_e64", "") in TRANS:
                if pv & cv_r: n = max(n, 1)
            if cons.op.startswith(("v_readlane", "v_readfirstlane")) and pv & cv_r: n = max(n, 1)
            if cons.op.startswith("v_permlane") and pv & cv_r: n = max(n, 2)
            if ("row_" in cons.mods or "quad_perm" in cons.mods or "wave_" in cons.mods or "dpp" in cons.op) and pv & cv_r: n = max(n, 2)
            if ps & cs_r: n = max(n, 2)
            if ps and cons.op.startswith(("v_readlane", "v_writelane")) and ps & cs_r: n = max(n, 4)
            if ("op_sel" in prod.mods or "dst_sel" in prod.mods) and not prod.op.startswith("v_pk_") and pv & (cv_r | cv_w): n = max(n, 1)
        if cons.kind == "vmem" and ps & cs_r: n = max(n, 5)
        if cons.kind in ("salu", "branch") and ps & (cs_r | ({("s","vcc_lo"),("s","vcc_hi")} if cons.op.startswith("s_cbranch_vcc") else set())):
            n = max(n, 1)
    if prod.kind == "mfma":
        P = prod.passes
        rw = {4: 8, 8: 12}[P]
        if cons.kind == "mfma":
            ab = cons.src - cons.srcC
            if pv & (regs_of(cons.ops[1]) | regs_of(cons.ops[2])): n = max(n, rw)
            if pv & cons.srcC and not (cons.srcC == prod.dst and cons.passes == P): n = max(n, {4: 6, 8: 10}[P])
            if pv & cv_w and cons.dst != prod.dst: n = max(n, rw)
        elif cons.kind in ("valu", "ds", "vmem"):
            if pv & (cv_r | cv_w): n = max(n, rw)
        if cons.kind == "valu" and prod.srcC & cv_w: n = max(n, {4: 3, 8: 7}[P])
        if cons.kind in ("ds", "vmem") and prod.srcC & cv_w: n = max(n, {4: 3, 8: 7}[P])
    if prod.kind == "salu":
        if ("s", "m0") in ps and cons.kind in ("vmem", "ds") and ("s", "m0") in cs_r: n = max(n, 1)
    if prod.kind == "vmem" and "store" in prod.op and ("x4" in prod.op or "x3" in prod.op):
        data = regs_of(prod.ops[0])
        if data & cv_w: n = max(n, 2 if cons.kind == "valu" else 1)
    return n

MAXW = 12
class Kern:
    def __init__(self, name):
        self.name = name; self.L = []; self.uid = 0
    def __call__(self, s):
        for line in s.split("\n"):
            line = line.strip()
            if line: self.L.append(line)
    def lab(self, base):
        self.uid += 1
        return f"{self.name}_{base}_{self.uid}"
    def finalize(self):
        ins = [Ins(x) for x in self.L]
        out = []
        def pad_needed(hist, c):
            d = 0; worst = 0
            for p in reversed(hist):
                if d >= MAXW: break
                k = need(p, c)
                if k - d > worst: worst = k - d
                d += p.states()
            return worst
        for c in ins:
            if c.kind not in ("label", "dir", "none"):
                hist = []
                for p in reversed(out[-40:]):
                    if p.op in ("s_branch", "s_endpgm"): break
                    hist.append(p)
                hist.reverse()
                w = pad_needed(hist, c)
                while w > 0:
                    k = min(w, 16); out.append(Ins(f"s_nop {k-1}")); w -= k
            out.append(c)
        labels = {x.label: i for i, x in enumerate(out) if x.label}
        for i, b in enumerate(out):
            if b.kind == "branch":
                j = labels[b.target]
                hist = []
                for p in reversed(out[max(0, i - 40):i + 1]):
                    if p is not b and p.op in ("s_branch", "s_endpgm"): break
                    hist.append(p)
                hist.reverse()
                seq = list(hist)
                d = 0
                for c in out[j:j + 40]:
                    if d >= MAXW: break
                    if c.kind in ("label", "dir", "none"): continue
                    w = pad_needed(seq, c)
                    if w > 0:
                        raise RuntimeError(f"hazard across branch {b.text} -> {c.text}: need {w} more states")
                    seq.append(c); d += c.states()
                    if c.op in ("s_branch", "s_endpgm"): break
        return [x.text for x in out]

class Alloc:
    def __init__(self, start=0, limit=256, kind="v"):
        self.next = start; self.limit = limit; self.hi = start; self.kind = kind
    def __call__(self, n=1, align=None):
        if align is None: align = 1 if n == 1 else (2 if n == 2 else 4)
        b = (self.next + align - 1) // align * align
        self.next = b + n
        assert self.next <= self.limit, f"out of {self.kind} regs: {self.next}"
        self.hi = max(self.hi, self.next)
        return b
    def mark(self): return self.next
    def reset(self, m): self.next = m

def descriptor(name, vgpr, sgpr=102, agpr_total=None):
    acc = (vgpr + 3) // 4 * 4
    tot = vgpr if agpr_total is None else acc + agpr_total
    return f""".amdhsa_kernel {name}
  .amdhsa_next_free_vgpr {tot}
  .amdhsa_next_free_sgpr {sgpr}
  .amdhsa_accum_offset {acc}
  .amdhsa_group_segment_fixed_size 0
  .amdhsa_kernarg_size 136
  .amdhsa_user_sgpr_count 2
  .amdhsa_user_sgpr_kernarg_segment_ptr 1
  .amdhsa_system_sgpr_workgroup_id_x 1
.end_amdhsa_kernel"""

def srd(k, s, ptr, nbytes, add=0):
    if add:
        k(f"s_add_u32 s{s}, s{ptr}, {add}")
        k(f"s_addc_u32 s{s+1}, s{ptr+1}, 0")
    else:
        k(f"s_mov_b32 s{s}, s{ptr}")
        k(f"s_mov_b32 s{s+1}, s{ptr+1}")
    k(f"s_mov_b32 s{s+2}, {nbytes}")
    k(f"s_mov_b32 s{s+3}, 0x00020000")
```

```python
from asmlib import *
NAME = "gated_mix__ssm_conv_s4__glu_gated_reglu__prompt"
KA = dict(u=0, Are=8, Aim=16, Bre=24, Bim=32, Cre=40, Cim=48, logdt=56, Dsk=64, Bx=72, Wg=80, Wu=88, Wd=96, gw=104, out=112, dbg=120, ws=128)
WS_UT = 0
WS_WDF = 2 << 20
WS_G = 4 << 20
WS_H = 8 << 20
WS_AT = 16 << 20
SZ_U = 2048 * 512 * 2
SZ_P = 512 * 128 * 2
SZ_W = 512 * 1376 * 2
SZ_WDF = 86 * 16 * 1024
SZ_H = 64 * 86 * 1024
LOG2E = 1.4426950408889634
import struct
def f32(x): return "0x%08x" % struct.unpack("<I", struct.pack("<f", x))[0]
def header(launch_lines):
    ref = open("cdna_kernels/" + NAME + ".s.ref").read().split("\n")
    hdr = [l for l in ref if l.startswith(";") and "@launch" not in l]
    lead = []
    for l in ref:
        if not l.startswith(";"): break
        if "@launch" in l: continue
        lead.append(l)
    return "\n".join(lead + launch_lines) + '\n.amdgcn_target "amdgcn-amd-amdhsa--gfx950"\n.text\n'
def kstart(name):
    return f".globl {name}\n.p2align 8\n.type {name},@function\n{name}:\n"
def csel(k, dst, a, b):
    inl = lambda x: isinstance(x, str) or -16 <= x <= 64
    if a == b:
        k(f"s_mov_b32 s{dst}, {a}")
    elif inl(a) or inl(b):
        k(f"s_cselect_b32 s{dst}, {a}, {b}")
    else:
        k(f"s_mov_b32 s{dst}, {b}")
        k(f"s_cselect_b32 s{dst}, {a}, s{dst}")
```

```python
from common import *
SLOT = 20480
def gen_gemm1(k, sid, lds_base=0, barrier=None, dbg=False):
    if barrier is None: barrier = lambda: k("s_barrier")
    V = Alloc(1, 256)
    vL = V(); vT0 = V(); vT1 = V(); vT2 = V()
    vX = V(); vW = V(); vB0 = V(); vB1 = V(); vA = [V() for _ in range(3)]
    acc = [[V(16) for j in range(3)] for tt in range(2)]
    fB = [[V(4) for tt in range(2)] for p in range(2)]
    fA = [[V(4) for j in range(3)] for p in range(2)]
    sU, sWg, sWu, sWs = 4, 6, 8, 10
    SX, SW, SH = 12, 16, 20
    sWave, sRt, sFt, sWt, sWf = 24, 25, 26, 27, 28
    sOx = [29, 30]; sOw = [31, 32, 33]; sMx = [34, 35]; sMw = [36, 37, 38]
    sT = 39; sT2 = 40; sCnt = 41
    k(f"s_load_dwordx2 s[{sU}:{sU+1}], s[0:1], {KA['u']}")
    k(f"s_load_dwordx2 s[{sWg}:{sWg+1}], s[0:1], {KA['Wg']}")
    k(f"s_load_dwordx2 s[{sWu}:{sWu+1}], s[0:1], {KA['Wu']}")
    k(f"s_load_dwordx2 s[{sWs}:{sWs+1}], s[0:1], {KA['ws']}")
    k(f"v_lshrrev_b32 v{vT0}, 6, v0")
    k(f"v_and_b32 v{vL}, 63, v0")
    k(f"v_readfirstlane_b32 s{sWave}, v{vT0}")
    k(f"s_and_b32 s{sT}, s{sid}, 7")
    k(f"s_lshr_b32 s{sT2}, s{sid}, 3")
    k(f"s_lshl_b32 s{sRt}, s{sT}, 1")
    k(f"s_and_b32 s{sT}, s{sT2}, 1")
    k(f"s_add_u32 s{sRt}, s{sRt}, s{sT}")
    k(f"s_lshr_b32 s{sFt}, s{sT2}, 1")
    k(f"s_lshr_b32 s{sWt}, s{sWave}, 1")
    k(f"s_and_b32 s{sWf}, s{sWave}, 1")
    k(f"v_lshrrev_b32 v{vT0}, 2, v{vL}")
    k(f"v_and_b32 v{vT1}, 3, v{vL}")
    k(f"v_lshrrev_b32 v{vT2}, 4, v{vL}")
    k(f"v_xor_b32 v{vT2}, v{vT2}, v{vT1}")
    k(f"v_lshlrev_b32 v{vX}, 10, v{vT0}")
    k(f"v_lshl_add_u32 v{vX}, v{vT2}, 4, v{vX}")
    k(f"s_lshl_b32 s{sT}, s{sWt}, 1")
    k(f"v_xor_b32 v{vT1}, s{sT}, v{vT1}")
    k(f"v_mul_u32_u24 v{vW}, 2752, v{vT0}")
    k(f"v_lshl_add_u32 v{vW}, v{vT1}, 4, v{vW}")
    k(f"s_lshl_b32 s{sT}, s{sRt}, 17")
    k(f"s_lshl_b32 s{sT2}, s{sWave}, 15")
    k(f"s_add_u32 s{sOx[0]}, s{sT}, s{sT2}")
    k(f"s_add_u32 s{sOx[1]}, s{sOx[0]}, 16384")
    k(f"s_lshl_b32 s{sMx[0]}, s{sWave}, 11")
    k(f"s_add_u32 s{sMx[0]}, s{sMx[0]}, {lds_base}")
    k(f"s_add_u32 s{sMx[1]}, s{sMx[0]}, 1024")
    k(f"s_mul_i32 s{sT}, s{sFt}, 192")
    for e in range(3):
        o0 = (e >> 1) * 64 + (e & 1) * 16 * 2752
        o1 = ((3 + e) >> 1) * 64 + ((3 + e) & 1) * 16 * 2752
        k(f"s_cmp_eq_u32 s{sWf}, 0")
        csel(k, sT2, o0, o1)
        k(f"s_add_u32 s{sOw[e]}, s{sT}, s{sT2}")
    k(f"s_mul_i32 s{sT}, s{sWave}, 3072")
    for e in range(3):
        k(f"s_add_u32 s{sMw[e]}, s{sT}, {lds_base + 8192 + e * 1024}")
    k(f"v_and_b32 v{vT0}, 31, v{vL}")
    k(f"v_lshrrev_b32 v{vT1}, 5, v{vL}")
    k(f"v_lshrrev_b32 v{vT2}, 2, v{vT0}")
    k(f"v_and_b32 v{vT2}, 3, v{vT2}")
    k(f"v_xor_b32 v{vT2}, v{vT2}, v{vT1}")
    k(f"v_lshlrev_b32 v{vB0}, 6, v{vT0}")
    k(f"v_lshl_add_u32 v{vB0}, v{vT2}, 4, v{vB0}")
    k(f"s_lshl_b32 s{sT}, s{sWt}, 12")
    k(f"s_add_u32 s{sT}, s{sT}, {lds_base}")
    k(f"v_add_u32 v{vB0}, s{sT}, v{vB0}")
    k(f"v_xor_b32 v{vB1}, 32, v{vB0}")
    k(f"v_lshrrev_b32 v{vT0}, 4, v{vL}")
    k(f"v_and_b32 v{vT0}, 1, v{vT0}")
    k(f"v_lshrrev_b32 v{vT1}, 5, v{vL}")
    k(f"v_lshlrev_b32 v{vT1}, 3, v{vT1}")
    k(f"v_bfe_u32 v{vT2}, v{vL}, 2, 2")
    k(f"v_add_u32 v{vT1}, v{vT1}, v{vT2}")
    k(f"v_lshlrev_b32 v{vT1}, 6, v{vT1}")
    k(f"v_and_b32 v{vT2}, 3, v{vL}")
    k(f"v_lshl_add_u32 v{vT1}, v{vT2}, 3, v{vT1}")
    k(f"v_mul_u32_u24 v{vT2}, 6144, v{vT0}")
    k(f"v_add_u32 v{vT1}, v{vT1}, v{vT2}")
    k(f"v_add_u32 v{vT1}, {lds_base + 8192}, v{vT1}")
    k(f"v_lshlrev_b32 v{vT0}, 5, v{vT0}")
    for jj in range(3):
        i0, c0 = jj >> 1, jj & 1
        i1, c1 = (3 + jj) >> 1, (3 + jj) & 1
        k(f"s_cmp_eq_u32 s{sWf}, 0")
        csel(k, sT, i0*2048, i1*2048)
        csel(k, sT2, c0*32, c1*32)
        k(f"v_xor_b32 v{vT2}, s{sT2}, v{vT0}")
        k(f"v_add3_u32 v{vA[jj]}, v{vT1}, v{vT2}, s{sT}")
    k("s_waitcnt lgkmcnt(0)")
    srd(k, SX, sU, SZ_U)
    k(f"s_cmp_eq_u32 s{sWt}, 0")
    k(f"s_cselect_b32 s{SW}, s{sWg}, s{sWu}")
    k(f"s_cselect_b32 s{SW+1}, s{sWg+1}, s{sWu+1}")
    k(f"s_mov_b32 s{SW+2}, {SZ_W}")
    k(f"s_mov_b32 s{SW+3}, 0x00020000")
    srd(k, SH, sWs, SZ_H, WS_H)

    def dma(slot):
        for n in range(2):
            k(f"s_add_u32 m0, s{sMx[n]}, {slot*SLOT}")
            k("s_nop 0")
            k(f"buffer_load_dwordx4 v{vX}, s[{SX}:{SX+3}], s{sOx[n]} offen lds")
            k(f"s_add_u32 s{sOx[n]}, s{sOx[n]}, 64")
        for e in range(3):
            k(f"s_add_u32 m0, s{sMw[e]}, {slot*SLOT}")
            k("s_nop 0")
            k(f"buffer_load_dwordx4 v{vW}, s[{SW}:{SW+3}], s{sOw[e]} offen lds")
            k(f"s_add_u32 s{sOw[e]}, s{sOw[e]}, {32*2752}")
    def reads(slot, ks, p):
        vB = vB0 if ks == 0 else vB1
        for tt in range(2):
            k(f"ds_read_b128 {vr(fB[p][tt],4)}, v{vB} offset:{slot*SLOT + tt*2048}")
        for jj in range(3):
            for n in range(2):
                k(f"ds_read_b64_tr_b16 {vr(fA[p][jj]+2*n,2)}, v{vA[jj]} offset:{slot*SLOT + ks*1024 + n*256}")
    def mfmas(p):
        for jj in range(3):
            for tt in range(2):
                k(f"v_mfma_f32_32x32x16_bf16 {vr(acc[tt][jj],16)}, {vr(fA[p][jj],4)}, {vr(fB[p][tt],4)}, {vr(acc[tt][jj],16)}")
    def stage(slot, issue, vm_next, last):
        if issue: dma((slot + 3) % 4)
        reads(slot, 1, 1)
        k("s_waitcnt lgkmcnt(8)")
        mfmas(0)
        if not last:
            k(f"s_waitcnt vmcnt({vm_next}) lgkmcnt(0)")
            barrier()
            reads((slot + 1) % 4, 0, 0)
        else:
            k("s_waitcnt lgkmcnt(0)")
        mfmas(1)
    dma(0); dma(1); dma(2)
    for tt in range(2):
        for jj in range(3):
            for r in range(16):
                k(f"v_mov_b32 v{acc[tt][jj]+r}, 0")
    k("s_waitcnt vmcnt(10)")
    barrier()
    reads(0, 0, 0)
    k(f"s_mov_b32 s{sCnt}, 3")
    lp = k.lab("g1loop")
    k(f"{lp}:")
    for s in range(4): stage(s, True, 10, False)
    k(f"s_sub_u32 s{sCnt}, s{sCnt}, 1")
    k(f"s_cmp_lg_u32 s{sCnt}, 0")
    k(f"s_cbranch_scc1 {lp}")
    stage(0, True, 10, False)
    stage(1, False, 5, False)
    stage(2, False, 0, False)
    stage(3, False, 0, True)
    k(f"v_lshlrev_b32 v{vT0}, 4, v{vL}")
    k(f"s_lshl_b32 s{sT}, s{sRt}, 2")
    k(f"s_lshl_b32 s{sT2}, s{sWt}, 1")
    k(f"s_add_u32 s{sT}, s{sT}, s{sT2}")
    k(f"s_mul_i32 s{sT}, s{sT}, 86")
    k(f"s_mul_i32 s{sT2}, s{sFt}, 6")
    k(f"s_mul_i32 s{sCnt}, s{sWf}, 3")
    k(f"s_add_u32 s{sT2}, s{sT2}, s{sCnt}")
    k(f"s_add_u32 s{sT}, s{sT}, s{sT2}")
    k(f"s_lshl_b32 s{sT}, s{sT}, 10")
    done = k.lab("g1done")
    hreg = [fB[0][0], fB[0][1], fB[1][0], fB[1][1], fA[0][0], fA[0][1]]
    for jj in range(3):
        k(f"s_add_u32 s{sCnt}, s{sT2}, {jj}")
        k(f"s_cmp_ge_u32 s{sCnt}, 86")
        k(f"s_cbranch_scc1 {done}")
        for tt in range(2):
            a = acc[tt][jj]; h = hreg[2*jj + tt]
            for r in range(8):
                k(f"v_max_f32 v{a+r}, 0, v{a+r}")
            for r in range(8):
                k(f"v_mul_f32 v{a+r}, v{a+r}, v{a+8+r}")
            for r in range(4):
                k(f"v_cvt_pk_bf16_f32 v{h+r}, v{a+2*r}, v{a+2*r+1}")
            k(f"s_add_u32 s{sCnt}, s{sT}, {(tt*86 + jj)*1024}")
            k(f"buffer_store_dwordx4 {vr(h,4)}, v{vT0}, s[{SH}:{SH+3}], s{sCnt} offen")
    k(f"{done}:")
    k("s_endpgm")
    return V.hi
```

```python
from common import *
import gemm1, os
DBGK = bool(os.environ.get("DBGK"))
def gen_l1(ssm_on=True):
    k = Kern("l1")
    k("s_cmp_ge_u32 s2, 496")
    k("s_cbranch_scc1 l1_end")
    k("s_cmp_lt_u32 s2, 256")
    k("s_cbranch_scc1 l1_ssm")
    k("s_sub_u32 s3, s2, 256")
    hi1 = gemm1.gen_gemm1(k, 3)
    k("l1_ssm:")
    hi2 = 0
    try:
        import ssm
        hi2 = ssm.gen_ssm(k, 2, dbgK=DBGK)
    except ImportError:
        pass
    k("l1_end:")
    k("s_endpgm")
    return k.finalize(), max(hi1, hi2)
```

```python
from common import *
def gen_l2(PD=6):
    k = Kern("l2")
    k("s_cmp_ge_u32 s2, 256")
    k("s_cbranch_scc1 l2_end")
    V = Alloc(1, 256)
    vL = V(); vT0 = V(); vT1 = V(); vF = V(); vAo = V(); vG = V(); vOo = V(); vLw = V(); vLr = V()
    va = V(16)
    acc = [[V(16) for tt in range(2)] for dt in range(2)]
    fr = [[V(4) for e in range(4)] for p in range(PD)]
    sWs, sOut = 4, 6
    SH, SWD, SA, SG, SO = 8, 12, 16, 20, 24
    sWave, sTb, sDb, sT, sT2, sH0, sH1, sW0, sW1 = 28, 29, 30, 31, 32, 33, 34, 35, 36
    k(f"s_load_dwordx2 s[{sWs}:{sWs+1}], s[0:1], {KA['ws']}")
    k(f"s_load_dwordx2 s[{sOut}:{sOut+1}], s[0:1], {KA['out']}")
    k(f"v_lshrrev_b32 v{vT0}, 6, v0")
    k(f"v_and_b32 v{vL}, 63, v0")
    k(f"v_readfirstlane_b32 s{sWave}, v{vT0}")
    k(f"s_and_b32 s{sT}, s2, 7")
    k(f"s_lshr_b32 s{sT2}, s2, 3")
    k(f"s_lshl_b32 s{sTb}, s{sT}, 2")
    k(f"s_and_b32 s{sT}, s{sT2}, 3")
    k(f"s_add_u32 s{sTb}, s{sTb}, s{sT}")
    k(f"s_lshr_b32 s{sDb}, s{sT2}, 2")
    k(f"v_lshlrev_b32 v{vF}, 4, v{vL}")
    k(f"s_mul_i32 s{sT}, s{sWave}, 22")
    k(f"s_mul_i32 s{sH0}, s{sTb}, 172")
    k(f"s_add_u32 s{sH0}, s{sH0}, s{sT}")
    k(f"s_lshl_b32 s{sH0}, s{sH0}, 10")
    k(f"s_add_u32 s{sH1}, s{sH0}, {86*1024}")
    k(f"s_lshl_b32 s{sW0}, s{sT}, 4")
    k(f"s_lshl_b32 s{sT2}, s{sDb}, 1")
    k(f"s_add_u32 s{sW0}, s{sW0}, s{sT2}")
    k(f"s_lshl_b32 s{sW0}, s{sW0}, 10")
    k(f"s_add_u32 s{sW1}, s{sW0}, 1024")
    k("s_waitcnt lgkmcnt(0)")
    srd(k, SH, sWs, SZ_H, WS_H)
    srd(k, SWD, sWs, SZ_WDF, WS_WDF)
    srd(k, SA, sWs, SZ_U, WS_AT)
    srd(k, SG, sWs, 8192, WS_G)
    srd(k, SO, sOut, SZ_U)
    def loads(p):
        k(f"buffer_load_dwordx4 {vr(fr[p][0],4)}, v{vF}, s[{SH}:{SH+3}], s{sH0} offen")
        k(f"buffer_load_dwordx4 {vr(fr[p][2],4)}, v{vF}, s[{SWD}:{SWD+3}], s{sW0} offen")
        k(f"buffer_load_dwordx4 {vr(fr[p][1],4)}, v{vF}, s[{SH}:{SH+3}], s{sH1} offen")
        k(f"buffer_load_dwordx4 {vr(fr[p][3],4)}, v{vF}, s[{SWD}:{SWD+3}], s{sW1} offen")
        k(f"s_add_u32 s{sH0}, s{sH0}, 1024")
        k(f"s_add_u32 s{sH1}, s{sH1}, 1024")
        k(f"s_add_u32 s{sW0}, s{sW0}, 16384")
        k(f"s_add_u32 s{sW1}, s{sW1}, 16384")
    k(f"v_and_b32 v{vT0}, 31, v{vL}")
    k(f"v_lshrrev_b32 v{vT1}, 5, v{vL}")
    k(f"v_lshlrev_b32 v{vAo}, 14, v{vT1}")
    k(f"v_lshl_add_u32 v{vAo}, v{vT0}, 1, v{vAo}")
    k(f"v_lshlrev_b32 v{vG}, 2, v{vT0}")
    k(f"v_lshlrev_b32 v{vOo}, 10, v{vT0}")
    k(f"v_lshl_add_u32 v{vOo}, v{vT1}, 3, v{vOo}")
    sD0, sT0 = 37, 38
    k(f"s_lshr_b32 s{sT}, s{sWave}, 1")
    k(f"s_lshl_b32 s{sT}, s{sT}, 5")
    k(f"s_lshl_b32 s{sD0}, s{sDb}, 6")
    k(f"s_add_u32 s{sD0}, s{sD0}, s{sT}")
    k(f"s_and_b32 s{sT}, s{sWave}, 1")
    k(f"s_lshl_b32 s{sT}, s{sT}, 5")
    k(f"s_lshl_b32 s{sT0}, s{sTb}, 6")
    k(f"s_add_u32 s{sT0}, s{sT0}, s{sT}")
    for p in range(PD): loads(p)
    k(f"s_lshl_b32 s{sT}, s{sT0}, 2")
    k(f"buffer_load_dword v{vG}, v{vG}, s[{SG}:{SG+3}], s{sT} offen")
    k(f"s_lshl_b32 s{sT}, s{sD0}, 12")
    k(f"s_lshl_b32 s{sT2}, s{sT0}, 1")
    k(f"s_add_u32 s{sT}, s{sT}, s{sT2}")
    for r in range(16):
        dd = 8 * (r // 4) + r % 4
        k(f"s_add_u32 s{sT2}, s{sT}, {dd*4096}")
        k(f"buffer_load_ushort v{va+r}, v{vAo}, s[{SA}:{SA+3}], s{sT2} offen")
    NE = 17
    for dt in range(2):
        for tt in range(2):
            for r in range(16): k(f"v_mov_b32 v{acc[dt][tt]+r}, 0")
    fin = k.lab("fin")
    NS = 22
    for s in range(NS):
        p = s % PD
        later = min(PD - 1, NS - 1 - s)
        extra = NE if s < PD else 0
        k(f"s_waitcnt vmcnt({min(63, 4*later + extra)})")
        if s == 20:
            k(f"s_cmp_eq_u32 s{sWave}, 3")
            k(f"s_cbranch_scc1 {fin}")
        for dt in range(2):
            for tt in range(2):
                k(f"v_mfma_f32_32x32x16_bf16 {vr(acc[dt][tt],16)}, {vr(fr[p][2+dt],4)}, {vr(fr[p][tt],4)}, {vr(acc[dt][tt],16)}")
        if s + PD < NS: loads(p)
    k(f"{fin}:")
    k(f"s_lshl_b32 s{sT}, s{sWave}, 12")
    k(f"v_add_u32 v{vLw}, s{sT}, v{vF}")
    k(f"s_lshl_b32 s{sT}, s{sWave}, 14")
    k(f"v_add_u32 v{vLr}, s{sT}, v{vF}")
    k("s_nop 7")
    for dt in range(2):
        for tt in range(2):
            tile = dt * 2 + tt
            for q in range(4):
                k(f"ds_write_b128 v{vLw}, {vr(acc[dt][tt]+4*q,4)} offset:{tile*16384 + q*1024}")
    k("s_waitcnt vmcnt(0) lgkmcnt(0)")
    k("s_barrier")
    A = [acc[0][0], acc[0][1], acc[1][0], acc[1][1]]
    for src in range(4):
        for q in range(4):
            k(f"ds_read_b128 {vr(A[src]+4*q,4)}, v{vLr} offset:{src*4096 + q*1024}")
    k(f"v_sub_f32 v{vT0}, 1.0, v{vG}")
    k(f"v_cvt_pk_bf16_f32 v{vT0}, v{vT0}, v{vT0}")
    k(f"v_lshlrev_b32 v{vT0}, 16, v{vT0}")
    for r in range(16):
        k(f"v_lshlrev_b32 v{va+r}, 16, v{va+r}")
        k(f"v_mul_f32 v{va+r}, v{vG}, v{va+r}")
    k("s_waitcnt lgkmcnt(0)")
    for r in range(16):
        k(f"v_add_f32 v{A[0]+r}, v{A[0]+r}, v{A[1]+r}")
        k(f"v_add_f32 v{A[2]+r}, v{A[2]+r}, v{A[3]+r}")
    for r in range(16):
        k(f"v_add_f32 v{A[0]+r}, v{A[0]+r}, v{A[2]+r}")
    for r in range(16):
        k(f"v_fma_f32 v{A[0]+r}, v{vT0}, v{A[0]+r}, v{va+r}")
    k(f"s_lshl_b32 s{sT}, s{sT0}, 10")
    k(f"s_lshl_b32 s{sT2}, s{sD0}, 1")
    k(f"s_add_u32 s{sT}, s{sT}, s{sT2}")
    for q in range(4):
        k(f"v_cvt_pk_bf16_f32 v{A[1]+2*q}, v{A[0]+4*q}, v{A[0]+4*q+1}")
        k(f"v_cvt_pk_bf16_f32 v{A[1]+2*q+1}, v{A[0]+4*q+2}, v{A[0]+4*q+3}")
        k(f"buffer_store_dwordx2 {vr(A[1]+2*q,2)}, v{vOo}, s[{SO}:{SO+3}], s{sT} offen offset:{q*16}")
    k("l2_end:")
    k("s_endpgm")
    return k.finalize(), V.hi
```

```python
from common import *
def gen_prep():
    k = Kern("prep")
    k("s_load_dwordx2 s[4:5], s[0:1], %d" % KA["u"])
    k("s_load_dwordx2 s[6:7], s[0:1], %d" % KA["ws"])
    k("s_load_dwordx2 s[8:9], s[0:1], %d" % KA["Wd"])
    k("s_load_dwordx2 s[10:11], s[0:1], %d" % KA["gw"])
    k("s_cmp_ge_u32 s2, 728")
    k("s_cbranch_scc1 prep_end")
    k("s_waitcnt lgkmcnt(0)")
    srd(k, 12, 4, SZ_U)
    k("s_cmp_ge_u32 s2, 600")
    k("s_cbranch_scc1 prep_g")
    k("s_cmp_ge_u32 s2, 256")
    k("s_cbranch_scc1 prep_wd")
    srd(k, 16, 6, SZ_U, WS_UT)
    k("s_lshr_b32 s20, s2, 3")
    k("s_and_b32 s21, s2, 7")
    k("s_lshl_b32 s22, s20, 16")
    k("s_lshl_b32 s23, s21, 7")
    k("s_add_u32 s22, s22, s23")
    k("s_add_u32 s24, s22, 32768")
    k("v_lshrrev_b32 v1, 3, v0")
    k("v_and_b32 v2, 7, v0")
    k("v_lshlrev_b32 v3, 10, v1")
    k("v_lshl_add_u32 v3, v2, 4, v3")
    k("buffer_load_dwordx4 v[4:7], v3, s[12:15], s22 offen")
    k("buffer_load_dwordx4 v[8:11], v3, s[12:15], s24 offen")
    k("v_mul_u32_u24 v12, 132, v1")
    k("v_lshl_add_u32 v12, v2, 4, v12")
    k("s_waitcnt vmcnt(1)")
    k("ds_write2_b32 v12, v4, v5 offset0:0 offset1:1")
    k("ds_write2_b32 v12, v6, v7 offset0:2 offset1:3")
    k("s_waitcnt vmcnt(0)")
    k("v_add_u32 v13, %d, v12" % (32 * 132))
    k("ds_write2_b32 v13, v8, v9 offset0:0 offset1:1")
    k("ds_write2_b32 v13, v10, v11 offset0:2 offset1:3")
    k("s_waitcnt lgkmcnt(0)")
    k("s_barrier")
    k("v_mul_u32_u24 v12, %d, v2" % (8 * 132))
    k("v_lshl_add_u32 v12, v1, 1, v12")
    for n in range(2):
        for i in range(8):
            k(f"ds_read_u16 v{16 + 8*n + i}, v12 offset:{i*132 + 64*n}")
    k("s_lshl_b32 s22, s21, 18")
    k("s_lshl_b32 s23, s20, 7")
    k("s_add_u32 s22, s22, s23")
    k("s_add_u32 s24, s22, %d" % (32 * 4096))
    k("v_lshlrev_b32 v3, 12, v1")
    k("v_lshl_add_u32 v3, v2, 4, v3")
    k("s_waitcnt lgkmcnt(0)")
    for n in range(2):
        for i in range(4):
            k(f"v_lshl_or_b32 v{4 + 4*n + i}, v{16 + 8*n + 2*i + 1}, 16, v{16 + 8*n + 2*i}")
    k("buffer_store_dwordx4 v[4:7], v3, s[16:19], s22 offen")
    k("buffer_store_dwordx4 v[8:11], v3, s[16:19], s24 offen")
    k("s_endpgm")
    k("prep_wd:")
    srd(k, 12, 8, SZ_W)
    srd(k, 16, 6, SZ_WDF, WS_WDF)
    k("v_lshrrev_b32 v1, 6, v0")
    k("s_nop 0")
    k("v_readfirstlane_b32 s20, v1")
    k("s_sub_u32 s21, s2, 256")
    k("s_lshl_b32 s21, s21, 2")
    k("s_add_u32 s21, s21, s20")
    k("s_lshr_b32 s22, s21, 4")
    k("s_and_b32 s23, s21, 15")
    k("s_lshl_b32 s22, s22, 14")
    k("s_lshl_b32 s23, s23, 6")
    k("s_add_u32 s22, s22, s23")
    k("s_lshl_b32 s24, s21, 10")
    k("v_and_b32 v1, 63, v0")
    k("v_and_b32 v2, 31, v1")
    k("v_lshrrev_b32 v3, 5, v1")
    k("v_lshlrev_b32 v4, 12, v3")
    k("v_lshl_add_u32 v4, v2, 1, v4")
    k("v_add_u32 v5, 8192, v4")
    for i in range(4):
        k(f"buffer_load_ushort v{8+i}, v4, s[12:15], s22 offen offset:{i*1024}")
    for i in range(4):
        k(f"buffer_load_ushort v{12+i}, v5, s[12:15], s22 offen offset:{i*1024}")
    k("v_lshlrev_b32 v6, 4, v1")
    k("s_waitcnt vmcnt(0)")
    for i in range(4):
        k(f"v_lshl_or_b32 v{16+i}, v{8+2*i+1}, 16, v{8+2*i}")
    k("buffer_store_dwordx4 v[16:19], v6, s[16:19], s24 offen")
    k("s_endpgm")
    k("prep_g:")
    srd(k, 16, 10, 1024)
    srd(k, 24, 6, 8192, WS_G)
    k("v_lshrrev_b32 v1, 6, v0")
    k("s_nop 0")
    k("v_readfirstlane_b32 s20, v1")
    k("s_sub_u32 s21, s2, 600")
    k("s_lshl_b32 s21, s21, 4")
    k("s_lshl_b32 s20, s20, 2")
    k("s_add_u32 s21, s21, s20")
    k("s_lshl_b32 s22, s21, 10")
    k("v_and_b32 v1, 63, v0")
    k("v_lshlrev_b32 v2, 4, v1")
    k("buffer_load_dwordx4 v[4:7], v2, s[16:19], 0 offen")
    for r in range(4):
        k(f"buffer_load_dwordx4 v[{8+4*r}:{11+4*r}], v2, s[12:15], s22 offen offset:{r*1024}")
    k("s_waitcnt vmcnt(4)")
    for i in range(4):
        k(f"v_lshlrev_b32 v{24+2*i}, 16, v{4+i}")
        k(f"v_and_b32 v{25+2*i}, 0xffff0000, v{4+i}")
    k("s_waitcnt vmcnt(0)")
    for r in range(4):
        for i in range(4):
            k(f"v_lshlrev_b32 v32, 16, v{8+4*r+i}")
            k(f"v_and_b32 v33, 0xffff0000, v{8+4*r+i}")
            k(f"v_mul_f32 v32, v32, v{24+2*i}")
            k(f"v_mul_f32 v33, v33, v{25+2*i}")
            k(f"v_cvt_pk_bf16_f32 v34, v32, v33")
            k(f"v_lshlrev_b32 v32, 16, v34")
            k(f"v_and_b32 v33, 0xffff0000, v34")
            if i == 0:
                k(f"v_add_f32 v{40+r}, v32, v33")
            else:
                k(f"v_add_f32 v{40+r}, v{40+r}, v32")
                k(f"v_add_f32 v{40+r}, v{40+r}, v33")
    for sh in (8, 4, 2, 1):
        for r in range(4):
            k(f"v_add_f32_dpp v{40+r}, v{40+r}, v{40+r} row_ror:{sh} row_mask:0xf bank_mask:0xf")
    for r in range(4):
        for q in range(4):
            k(f"v_readlane_b32 s{32+4*r+q}, v{40+r}, {16*q}")
    for r in range(4):
        k(f"v_mov_b32 v{44+r}, s{32+4*r}")
        k(f"v_add_f32 v{44+r}, s{33+4*r}, v{44+r}")
        k(f"v_add_f32 v{44+r}, s{34+4*r}, v{44+r}")
        k(f"v_add_f32 v{44+r}, s{35+4*r}, v{44+r}")
    k("v_cmp_eq_u32 vcc, 1, v1")
    k("v_cndmask_b32 v44, v44, v45, vcc")
    k("v_cmp_eq_u32 vcc, 2, v1")
    k("v_cndmask_b32 v44, v44, v46, vcc")
    k("v_cmp_eq_u32 vcc, 3, v1")
    k("v_cndmask_b32 v44, v44, v47, vcc")
    k("v_cvt_pk_bf16_f32 v44, v44, v44")
    k("v_lshlrev_b32 v44, 16, v44")
    k("v_mul_f32 v44, %s, v44" % f32(-LOG2E))
    k("v_exp_f32 v44, v44")
    k("v_add_f32 v44, 1.0, v44")
    k("v_rcp_f32 v44, v44")
    k("v_cvt_pk_bf16_f32 v44, v44, v44")
    k("v_lshlrev_b32 v44, 16, v44")
    k("v_lshlrev_b32 v2, 2, v1")
    k("s_lshl_b32 s22, s21, 2")
    k("v_cmp_gt_u32 vcc, 4, v1")
    k("s_and_saveexec_b64 s[30:31], vcc")
    k("buffer_store_dword v44, v2, s[24:27], s22 offen")
    k("prep_end:")
    k("s_endpgm")
    return k.finalize(), 48
```

```python
from common import *
import math
TROW = 272; TSZ = 64 * TROW
XK = 4 * TSZ
CPY = 4416; UOFF = 4 * CPY; CHSZ = UOFF + 7680
XC = 2 * CHSZ
ROWS = {0:0,1:1,2:2,3:3,4:4,5:5,6:6,7:7, 1024:8,1032:9,1280:10,1288:11,1536:12,1544:13,1792:14,1800:15,
        256:16,258:17,262:21,264:22,512:24,516:25,520:26,768:28,772:29,776:30}
def gen_ssm(k, sid, lds_base=0, barrier=None, dbgK=False):
    if barrier is None: barrier = lambda: k("s_barrier")
    V = Alloc(1, 256)
    vL = V(); vHi = V(); vC = V(); vT = [V() for _ in range(6)]
    vU = V(8)
    vP = V(6)
    sP = [4, 6, 8, 10, 12, 14]
    sLd, sDs, sWs = 16, 18, 20
    SR = 24
    SUT, SAT = 28, 32
    sWave, sCh, sHf, sD, sT, sT2, sLdv, sDsv, sOff = 36, 37, 38, 39, 40, 41, 42, 43, 44
    for i, nm in enumerate(["Are", "Aim", "Bre", "Bim", "Cre", "Cim"]):
        k(f"s_load_dwordx2 s[{sP[i]}:{sP[i]+1}], s[0:1], {KA[nm]}")
    k(f"s_load_dwordx2 s[{sLd}:{sLd+1}], s[0:1], {KA['logdt']}")
    k(f"s_load_dwordx2 s[{sDs}:{sDs+1}], s[0:1], {KA['Dsk']}")
    k(f"s_load_dwordx2 s[{sWs}:{sWs+1}], s[0:1], {KA['ws']}")
    k(f"v_lshrrev_b32 v{vT[0]}, 6, v0")
    k(f"v_and_b32 v{vL}, 63, v0")
    k(f"v_readfirstlane_b32 s{sWave}, v{vT[0]}")
    k(f"v_lshrrev_b32 v{vHi}, 5, v{vL}")
    k(f"v_and_b32 v{vC}, 31, v{vL}")
    k(f"s_lshr_b32 s{sCh}, s{sWave}, 1")
    k(f"s_and_b32 s{sHf}, s{sWave}, 1")
    k(f"s_lshl_b32 s{sD}, s{sid}, 1")
    k(f"s_add_u32 s{sD}, s{sD}, s{sCh}")
    k(f"s_lshl_b32 s{sT}, s{sid}, 2")
    k("s_waitcnt lgkmcnt(0)")
    k(f"s_load_dword s{sLdv}, s[{sLd}:{sLd+1}], s{sT}")
    k(f"s_load_dword s{sDsv}, s[{sDs}:{sDs+1}], s{sT}")
    k(f"s_lshl_b32 s{sOff}, s{sD}, 8")
    k(f"s_lshl_b32 s{sT}, s{sHf}, 7")
    k(f"s_add_u32 s{sOff}, s{sOff}, s{sT}")
    k(f"v_lshlrev_b32 v{vT[0]}, 1, v{vL}")
    k(f"s_mov_b32 s{SR+2}, {SZ_P}")
    k(f"s_mov_b32 s{SR+3}, 0x00020000")
    for i in range(6):
        k(f"s_mov_b32 s{SR}, s{sP[i]}")
        k(f"s_mov_b32 s{SR+1}, s{sP[i]+1}")
        k(f"buffer_load_ushort v{vP+i}, v{vT[0]}, s[{SR}:{SR+3}], s{sOff} offen")
    srd(k, SUT, sWs, SZ_U, WS_UT)
    srd(k, SAT, sWs, SZ_U, WS_AT)
    k(f"s_lshl_b32 s{sOff}, s{sD}, 12")
    k(f"s_lshl_b32 s{sT}, s{sHf}, 11")
    k(f"s_add_u32 s{sOff}, s{sOff}, s{sT}")
    k(f"v_lshlrev_b32 v{vT[1]}, 5, v{vL}")
    k(f"buffer_load_dwordx4 {vr(vU,4)}, v{vT[1]}, s[{SUT}:{SUT+3}], s{sOff} offen")
    k(f"buffer_load_dwordx4 {vr(vU+4,4)}, v{vT[1]}, s[{SUT}:{SUT+3}], s{sOff} offen offset:16")
    k("s_waitcnt lgkmcnt(0)")
    k(f"s_lshl_b32 s{sT}, s{sCh}, 4")
    k(f"s_lshr_b32 s{sLdv}, s{sLdv}, s{sT}")
    k(f"s_lshl_b32 s{sLdv}, s{sLdv}, 16")
    k(f"s_lshr_b32 s{sDsv}, s{sDsv}, s{sT}")
    k(f"s_lshl_b32 s{sDsv}, s{sDsv}, 16")
    m0_ = V.mark()
    vDt = V()
    lr, li, wr, wi = V(), V(), V(), V()
    E = {m: (V(), V()) for m in (1, 8, 256)}
    k(f"v_mov_b32 v{vDt}, {f32(LOG2E)}")
    k(f"v_mul_f32 v{vDt}, s{sLdv}, v{vDt}")
    k(f"v_exp_f32 v{vDt}, v{vDt}")
    k(f"v_cvt_pk_bf16_f32 v{vDt}, v{vDt}, v{vDt}")
    k(f"v_lshlrev_b32 v{vDt}, 16, v{vDt}")
    k("s_waitcnt vmcnt(2)")
    for i in range(6): k(f"v_lshlrev_b32 v{vP+i}, 16, v{vP+i}")
    k(f"v_mul_f32 v{lr}, v{vDt}, v{vP}")
    k(f"v_mul_f32 v{li}, v{vDt}, v{vP+1}")
    k(f"v_mul_f32 v{vP+2}, v{vDt}, v{vP+2}")
    k(f"v_mul_f32 v{vP+3}, v{vDt}, v{vP+3}")
    k(f"v_mul_f32 v{vT[0]}, v{vP+4}, v{vP+2}")
    k(f"v_mul_f32 v{vT[1]}, v{vP+4}, v{vP+3}")
    k(f"v_fma_f32 v{wr}, -v{vP+5}, v{vP+3}, v{vT[0]}")
    k(f"v_fma_f32 v{wi}, v{vP+5}, v{vP+2}, v{vT[1]}")
    for m in (1, 8, 256):
        er, ei = E[m]
        k(f"v_mul_f32 v{vT[0]}, {f32(m * LOG2E)}, v{lr}")
        k(f"v_mul_f32 v{vT[1]}, {f32(m / (2 * math.pi))}, v{li}")
        k(f"v_exp_f32 v{vT[0]}, v{vT[0]}")
        k(f"v_fract_f32 v{vT[1]}, v{vT[1]}")
        k(f"v_cos_f32 v{er}, v{vT[1]}")
        k(f"v_sin_f32 v{ei}, v{vT[1]}")
        k(f"v_mul_f32 v{er}, v{vT[0]}, v{er}")
        k(f"v_mul_f32 v{ei}, v{vT[0]}, v{ei}")
    vTab = V()
    k(f"s_mul_i32 s{sT}, s{sWave}, {TSZ}")
    k(f"s_add_u32 s{sT}, s{sT}, {lds_base}")
    k(f"v_lshlrev_b32 v{vTab}, 2, v{vL}")
    k(f"v_add_u32 v{vTab}, s{sT}, v{vTab}")
    tw = [V() for _ in range(4)]; twi = [0]
    def wr_row(p, x, neg):
        t = tw[twi[0] % 4]; twi[0] += 1
        k(f"v_cvt_pk_bf16_f32 v{t}, v{x[0]}, {'-' if neg else ''}v{x[1]}")
        k(f"ds_write_b32 v{vTab}, v{t} offset:{p*TROW}")
    def cmul(c, a, e, t):
        return [f"v_mul_f32 v{t[0]}, v{a[0]}, v{e[0]}", f"v_mul_f32 v{t[1]}, v{a[0]}, v{e[1]}",
                f"v_fma_f32 v{c[0]}, -v{a[1]}, v{e[1]}, v{t[0]}", f"v_fma_f32 v{c[1]}, v{a[1]}, v{e[0]}, v{t[1]}"]
    G = [(V(), V()), (V(), V())]
    tG = (V(), V()); tX = (V(), V())
    X = {a: (V(), V()) for a in (0, 2, 4, 6, 8)}
    Xt = (V(), V())
    gops = []; xops = []
    k(f"v_mov_b32 v{G[0][0]}, 1.0"); k(f"v_mov_b32 v{G[0][1]}, 0")
    gops.append(([], [(32, G[0], False)]))
    gops.append(([], [(33, E[8], False)]))
    prev = E[8]
    for c in range(2, 32):
        cur = G[c & 1]
        gops.append((cmul(cur, prev, E[8], tG), [(32 + c, cur, False)])); prev = cur
    X[0] = (wr, wi)
    xops.append(([], [(ROWS[0], X[0], True)]))
    prev = X[0]
    for a in range(1, 9):
        cur = X[a] if a in X else Xt
        w = [(ROWS[a], cur, True)] if a in ROWS else []
        xops.append((cmul(cur, prev, E[1], tX), w)); prev = cur
    def step(a_from, a_to, rows):
        r = X[a_from]
        xops.append((cmul(r, r, E[256], tX), [(p, r, True) for p in rows]))
        X[a_to] = r
    step(0, 256, [16]); step(2, 258, [17]); step(4, 260, [18, 20]); step(6, 262, [21]); step(8, 264, [22])
    step(256, 512, [24]); step(260, 516, [25]); step(264, 520, [26])
    step(512, 768, [28]); step(516, 772, [29]); step(520, 776, [30])
    step(768, 1024, [8]); step(776, 1032, [9])
    step(1024, 1280, [10]); step(1032, 1288, [11])
    step(1280, 1536, [12]); step(1288, 1544, [13])
    step(1536, 1792, [14]); step(1544, 1800, [15])
    n = max(len(gops), len(xops))
    for i in range(n):
        a = gops[i] if i < len(gops) else ([], [])
        b = xops[i] if i < len(xops) else ([], [])
        la, lb = a[0], b[0]
        for j in range(max(len(la), len(lb))):
            if j < len(la): k(la[j])
            if j < len(lb): k(lb[j])
        for w in a[1] + b[1]: wr_row(*w)
    V.reset(m0_)
    acc = V(16); fa = [V(4), V(4)]; fb = [V(4), V(4)]
    vRd = V()
    k(f"v_mul_u32_u24 v{vRd}, {TROW}, v{vC}")
    k(f"v_lshl_add_u32 v{vRd}, v{vHi}, 4, v{vRd}")
    k(f"s_mul_i32 s{sT}, s{sWave}, {TSZ}")
    k(f"s_add_u32 s{sT}, s{sT}, {lds_base}")
    k(f"v_add_u32 v{vRd}, s{sT}, v{vRd}")
    for r in range(16): k(f"v_mov_b32 v{acc+r}, 0")
    k("s_waitcnt lgkmcnt(0)")
    def rd(j):
        k(f"ds_read_b128 {vr(fa[j&1],4)}, v{vRd} offset:{32*j}")
        k(f"ds_read_b128 {vr(fb[j&1],4)}, v{vRd} offset:{32*j + 32*TROW}")
    rd(0)
    for j in range(8):
        if j < 7:
            rd(j + 1); k("s_waitcnt lgkmcnt(2)")
        else: k("s_waitcnt lgkmcnt(0)")
        k(f"v_mfma_f32_32x32x16_bf16 {vr(acc,16)}, {vr(fa[j&1],4)}, {vr(fb[j&1],4)}, {vr(acc,16)}")
    vXw = V(); vXr = V(); oth = V(8); dd = V(4); vKb = V(); vA0 = V()
    k(f"s_lshl_b32 s{sT}, s{sWave}, 11")
    k(f"s_add_u32 s{sT}, s{sT}, {lds_base + XK}")
    k(f"v_lshlrev_b32 v{vXw}, 4, v{vL}")
    k(f"v_add_u32 v{vXw}, s{sT}, v{vXw}")
    k(f"v_xor_b32 v{vXr}, 2048, v{vXw}")
    assert (lds_base + XK) % 4096 == 0
    sCb = 45
    k(f"s_mul_i32 s{sCb}, s{sCh}, {CHSZ}")
    k(f"s_add_u32 s{sCb}, s{sCb}, {lds_base}")
    k(f"v_lshlrev_b32 v{vKb}, 4, v{vC}")
    k(f"s_add_u32 s{sT}, s{sCb}, 4080")
    k(f"v_sub_u32 v{vKb}, s{sT}, v{vKb}")
    p1 = k.lab("kf1"); pj = k.lab("kfj")
    k(f"s_cmp_eq_u32 s{sHf}, 1")
    k(f"s_cbranch_scc1 {p1}")
    def xchg(send, keep):
        k("s_nop 7"); k("s_nop 3")
        k(f"ds_write_b128 v{vXw}, {vr(send,4)}")
        k(f"ds_write_b128 v{vXw}, {vr(send+4,4)} offset:1024")
        k("s_waitcnt lgkmcnt(0)")
        barrier()
        k(f"ds_read_b128 {vr(oth,4)}, v{vXr}")
        k(f"ds_read_b128 {vr(oth+4,4)}, v{vXr} offset:1024")
        k("s_waitcnt lgkmcnt(0)")
        for r in range(8): k(f"v_add_f32 v{keep+r}, v{keep+r}, v{oth+r}")
    def half(R, r3, r2, r1, r0):
        k(f"v_xor_b32 v{vA0}, 1, v{vHi}")
        k(f"v_lshl_add_u32 v{vA0}, v{vA0}, 3, v{vKb}")
        if R: k(f"v_subrev_u32 v{vA0}, {512*R}, v{vA0}")
        k(f"v_cvt_pk_bf16_f32 v{dd}, v{r3}, v{r2}")
        k(f"v_cvt_pk_bf16_f32 v{dd+1}, v{r1}, v{r0}")
        k(f"ds_write_b64 v{vA0}, {vr(dd,2)}")
    xchg(acc + 8, acc)
    half(0, acc + 3, acc + 2, acc + 1, acc + 0)
    k(f"v_and_b32 v{vA0}, 1, v{vC}")
    k(f"v_cmp_eq_u32 vcc, 1, v{vA0}")
    for ps in range(2):
        a0, a8 = acc + 4 + 2 * ps, acc + 5 + 2 * ps
        k(f"v_lshlrev_b32 v{vA0}, 10, v{vHi}")
        k(f"v_sub_u32 v{vA0}, v{vKb}, v{vA0}")
        k(f"v_subrev_u32 v{vA0}, {512*(4+ps)}, v{vA0}")
        k(f"v_cndmask_b32 v{oth}, v{a0}, v{a8}, vcc")
        k(f"v_cvt_pk_bf16_f32 v{dd}, v{a8}, v{a8}")
        k(f"v_cvt_pk_bf16_f32 v{dd+1}, v{a8}, v{oth}")
        k(f"v_cvt_pk_bf16_f32 v{dd+2}, v{a0}, v{a0}")
        k(f"v_cvt_pk_bf16_f32 v{dd+3}, v{a0}, v{a0}")
        k(f"ds_write_b128 v{vA0}, {vr(dd,4)}")
        k("s_nop 1")
    k(f"s_branch {pj}")
    k(f"{p1}:")
    xchg(acc, acc + 8)
    half(1, acc + 10, acc + 9, acc + 8, acc + 8)
    k(f"v_lshlrev_b32 v{vA0}, 9, v{vHi}")
    k(f"v_sub_u32 v{vA0}, v{vKb}, v{vA0}")
    k(f"v_subrev_u32 v{vA0}, 1024, v{vA0}")
    k(f"v_cvt_pk_bf16_f32 v{oth}, v{acc+14}, v{acc+14}")
    k(f"v_cvt_pk_bf16_f32 v{oth+1}, v{acc+13}, v{acc+13}")
    k(f"v_cvt_pk_bf16_f32 v{oth+2}, v{acc+13}, v{acc+12}")
    k(f"v_cvt_pk_bf16_f32 v{oth+3}, v{acc+12}, v{acc+12}")
    k(f"ds_write_b128 v{vA0}, {vr(oth,4)}")
    k(f"{pj}:")
    vI = V(); z = V(4)
    k(f"s_lshl_b32 s{sT}, s{sHf}, 6")
    k(f"v_add_u32 v{vI}, s{sT}, v{vL}")
    for r in range(4): k(f"v_mov_b32 v{z+r}, 0")
    k(f"v_lshrrev_b32 v{vT[0]}, 1, v{vI}")
    k(f"v_mul_u32_u24 v{vT[0]}, 80, v{vT[0]}")
    k(f"v_and_b32 v{vT[1]}, 1, v{vI}")
    k(f"v_lshl_add_u32 v{vT[0]}, v{vT[1]}, 5, v{vT[0]}")
    k(f"s_add_u32 s{sT}, s{sCb}, {UOFF + 31*80}")
    k(f"v_add_u32 v{vT[0]}, s{sT}, v{vT[0]}")
    k("s_waitcnt vmcnt(0)")
    k(f"ds_write_b128 v{vT[0]}, {vr(vU,4)}")
    k(f"ds_write_b128 v{vT[0]}, {vr(vU+4,4)} offset:16")
    k(f"v_lshlrev_b32 v{vT[2]}, 4, v{vI}")
    k(f"s_add_u32 s{sT}, s{sCb}, {UOFF}")
    k(f"v_add_u32 v{vT[2]}, s{sT}, v{vT[2]}")
    k(f"ds_write_b128 v{vT[2]}, {vr(z,4)}")
    k(f"v_cmp_gt_u32 vcc, 27, v{vI}")
    k(f"s_and_saveexec_b64 s[46:47], vcc")
    k(f"ds_write_b128 v{vT[2]}, {vr(z,4)} offset:2048")
    k("s_mov_b64 exec, s[46:47]")
    k(f"v_lshrrev_b32 v{vT[3]}, 3, v{vI}")
    k(f"v_mul_u32_u24 v{vT[3]}, {CPY}, v{vT[3]}")
    k(f"v_and_b32 v{vT[4]}, 7, v{vI}")
    k(f"v_lshl_add_u32 v{vT[3]}, v{vT[4]}, 4, v{vT[3]}")
    k(f"s_add_u32 s{sT}, s{sCb}, 4096")
    k(f"v_add_u32 v{vT[3]}, s{sT}, v{vT[3]}")
    k(f"v_cmp_gt_u32 vcc, 32, v{vI}")
    k(f"s_and_saveexec_b64 s[46:47], vcc")
    k(f"ds_write_b128 v{vT[3]}, {vr(z,4)}")
    k("s_mov_b64 exec, s[46:47]")
    k("s_waitcnt lgkmcnt(0)")
    barrier()
    V.reset(m0_)
    a = [V(4, 4), V(4, 4)]; a45 = [V(2), V(2)]
    q1 = V(4); q2 = V(4); q3 = V(4); vS = V()
    k(f"v_lshlrev_b32 v{vS}, 4, v{vI}")
    k(f"v_add_u32 v{vS}, s{sCb}, v{vS}")
    for n in range(2):
        k(f"ds_read_b128 {vr(a[n],4)}, v{vS} offset:{2048*n}")
        k(f"ds_read_b64 {vr(a45[n],2)}, v{vS} offset:{2048*n+16}")
    if dbgK:
        SD = 48
        srd(k, SD, sWs, SZ_U, 24 << 20)
        k(f"s_lshl_b32 s{sT}, s{sD}, 12")
        k(f"v_lshlrev_b32 v{vT[5]}, 4, v{vI}")
        k("s_waitcnt lgkmcnt(0)")
        k(f"buffer_store_dwordx4 {vr(a[0],4)}, v{vT[5]}, s[{SD}:{SD+3}], s{sT} offen")
        k(f"buffer_store_dwordx4 {vr(a[1],4)}, v{vT[5]}, s[{SD}:{SD+3}], s{sT} offen offset:2048")
    for n in range(2):
        k(f"s_waitcnt lgkmcnt({2 if n == 0 else 3})")
        A = [a[n], a[n]+1, a[n]+2, a[n]+3, a45[n], a45[n]+1]
        for r in range(4): k(f"v_alignbit_b32 v{q1+r}, v{A[r+1]}, v{A[r]}, 16")
        for r in range(4): k(f"v_mov_b32 v{q2+r}, v{A[r+1]}")
        for r in range(4): k(f"v_alignbit_b32 v{q3+r}, v{A[r+2]}, v{A[r+1]}, 16")
        k(f"ds_write_b128 v{vS}, {vr(q1,4)} offset:{2048*n + CPY}")
        k(f"ds_write_b128 v{vS}, {vr(q2,4)} offset:{2048*n + 2*CPY}")
        k(f"ds_write_b128 v{vS}, {vr(q3,4)} offset:{2048*n + 3*CPY}")
        if n == 0: k("s_nop 3")
    k("s_waitcnt lgkmcnt(0)")
    barrier()
    V.reset(m0_)
    H = [V(16), V(16)]
    fT = [[V(4) for e in range(4)] for p in range(2)]
    fU = [[V(4) for e in range(4)] for p in range(2)]
    vK = V(); vUa = V()
    k(f"v_and_b32 v{vT[0]}, 3, v{vC}")
    k(f"v_sub_u32 v{vT[0]}, 3, v{vT[0]}")
    k(f"v_mul_u32_u24 v{vK}, {CPY}, v{vT[0]}")
    k(f"v_lshrrev_b32 v{vT[1]}, 2, v{vC}")
    k(f"v_lshlrev_b32 v{vT[1]}, 3, v{vT[1]}")
    k(f"v_sub_u32 v{vK}, v{vK}, v{vT[1]}")
    k(f"v_lshl_add_u32 v{vK}, v{vHi}, 4, v{vK}")
    k(f"s_lshl_b32 s{sT}, s{sHf}, 10")
    k(f"s_sub_u32 s{sT}, s{sCb}, s{sT}")
    k(f"s_add_u32 s{sT}, s{sT}, {2*2044 - 32*94}")
    k(f"v_add_u32 v{vK}, s{sT}, v{vK}")
    k(f"v_mul_u32_u24 v{vUa}, 80, v{vC}")
    k(f"v_lshl_add_u32 v{vUa}, v{vHi}, 4, v{vUa}")
    k(f"s_mul_i32 s{sT}, s{sHf}, {16*80}")
    k(f"s_sub_u32 s{sT}, s{sCb}, s{sT}")
    k(f"s_add_u32 s{sT}, s{sT}, {UOFF + 16*80}")
    k(f"v_add_u32 v{vUa}, s{sT}, v{vUa}")
    for h in range(2):
        for r in range(16): k(f"v_mov_b32 v{H[h]+r}, 0")
    def rdj(jj):
        p = jj & 1
        for idx, e in enumerate((0, -1, 64, 63)):
            off = 32 * (94 - (2 * jj + e))
            k(f"ds_read_b64 {vr(fT[p][idx],2)}, v{vK} offset:{off}")
            k(f"ds_read_b64 {vr(fT[p][idx]+2,2)}, v{vK} offset:{off+8}")
        for idx, (kh, sh) in enumerate(((0, 0), (1, 0), (0, 2560), (1, 2560))):
            k(f"ds_read_b128 {vr(fU[p][idx],4)}, v{vUa} offset:{(15-jj)*80 + 32*kh + sh}")
    def mm(d, a_, b_): k(f"v_mfma_f32_32x32x16_bf16 {vr(d,16)}, {vr(a_,4)}, {vr(b_,4)}, {vr(d,16)}")
    rdj(0)
    for jj in range(16):
        p = jj & 1
        if jj < 15:
            rdj(jj + 1); k("s_waitcnt lgkmcnt(12)")
        else: k("s_waitcnt lgkmcnt(0)")
        mm(H[0], fT[p][0], fU[p][0]); mm(H[1], fT[p][0], fU[p][2])
        mm(H[0], fT[p][1], fU[p][1]); mm(H[1], fT[p][1], fU[p][3])
        mm(H[1], fT[p][2], fU[p][0]); mm(H[1], fT[p][3], fU[p][1])
    oth = V(16); uu = V(8); vXw = V(); vXr = V(); vUo = V(); vAo = V()
    k(f"s_lshl_b32 s{sT}, s{sWave}, 12")
    k(f"s_add_u32 s{sT}, s{sT}, {lds_base + XC}")
    k(f"v_lshlrev_b32 v{vXw}, 4, v{vL}")
    k(f"v_add_u32 v{vXw}, s{sT}, v{vXw}")
    k(f"s_xor_b32 s{sT2}, s{sWave}, 1")
    k(f"s_lshl_b32 s{sT2}, s{sT2}, 12")
    k(f"s_add_u32 s{sT2}, s{sT2}, {lds_base + XC}")
    k(f"v_lshlrev_b32 v{vXr}, 4, v{vL}")
    k(f"v_add_u32 v{vXr}, s{sT2}, v{vXr}")
    k(f"v_mul_u32_u24 v{vUo}, 80, v{vC}")
    k(f"v_lshl_add_u32 v{vUo}, v{vHi}, 3, v{vUo}")
    k(f"s_mul_i32 s{sT}, s{sHf}, {32*80}")
    k(f"s_add_u32 s{sT}, s{sT}, s{sCb}")
    k(f"s_add_u32 s{sT}, s{sT}, {UOFF + 31*80}")
    k(f"v_add_u32 v{vUo}, s{sT}, v{vUo}")
    k(f"v_lshlrev_b32 v{vAo}, 6, v{vC}")
    k(f"v_lshl_add_u32 v{vAo}, v{vHi}, 3, v{vAo}")
    for q in range(4): k(f"ds_read_b64 {vr(uu+2*q,2)}, v{vUo} offset:{16*q}")
    p1 = k.lab("cf1"); pj = k.lab("cfj")
    k(f"s_cmp_eq_u32 s{sHf}, 1")
    k(f"s_cbranch_scc1 {p1}")
    def fin(send, keep):
        k("s_nop 7"); k("s_nop 3")
        for q in range(4): k(f"ds_write_b128 v{vXw}, {vr(send+4*q,4)} offset:{1024*q}")
        k("s_waitcnt lgkmcnt(0)")
        barrier()
        for q in range(4): k(f"ds_read_b128 {vr(oth+4*q,4)}, v{vXr} offset:{1024*q}")
        k("s_waitcnt lgkmcnt(0)")
        for r in range(16): k(f"v_add_f32 v{keep+r}, v{keep+r}, v{oth+r}")
        for q in range(4):
            for e in range(2):
                u = uu + 2*q + e
                k(f"v_lshlrev_b32 v{oth}, 16, v{u}")
                k(f"v_and_b32 v{oth+1}, 0xffff0000, v{u}")
                k(f"v_fma_f32 v{oth}, v{oth}, s{sDsv}, v{keep+4*q+2*e}")
                k(f"v_fma_f32 v{oth+1}, v{oth+1}, s{sDsv}, v{keep+4*q+2*e+1}")
                k(f"v_cvt_pk_bf16_f32 v{u}, v{oth}, v{oth+1}")
            k(f"buffer_store_dwordx2 {vr(uu+2*q,2)}, v{vAo}, s[{SAT}:{SAT+3}], s{sOff} offen offset:{16*q}")
    fin(H[1], H[0])
    k(f"s_branch {pj}")
    k(f"{p1}:")
    fin(H[0], H[1])
    k(f"{pj}:")
    k("s_endpgm")
    return V.hi
```

```python
import sys
sys.path.insert(0, "gen")
from common import *
import importlib
def build(kernels, path):
    launch = [f"; @launch kernel={n} grid=({g},1,1) block=({b},1,1) lds={l}" for (n, _, _, g, b, l) in kernels]
    s = header(launch)
    seen = set()
    for (n, lines, vg, g, b, l) in kernels:
        if n in seen: continue
        seen.add(n)
        s += kstart(n) + "\n".join(lines) + "\n"
    s += '.section .rodata,"a"\n'
    seen = set()
    for (n, lines, vg, g, b, l) in kernels:
        if n in seen: continue
        seen.add(n)
        s += ".p2align 6\n" + descriptor(n, vg) + "\n"
    open(path, "w").write(s)
if __name__ == "__main__":
    import prep
    ks = []
    l, vg = prep.gen_prep(); ks.append(("prep_kernel", l, vg, 728, 256, 8448))
    which = sys.argv[2] if len(sys.argv) > 2 else "all"
    if which != "prep":
        import l1
        l, vg = l1.gen_l1(); ks.append(("l1_kernel", l, vg, 512, 256, 81920))
    if which == "all":
        import l2
        l, vg = l2.gen_l2(); ks.append(("l2_kernel", l, vg, 256, 256, 65536))
    build(ks, sys.argv[1])
```
